```python
import torch

def _softmax(x, axis=-1):
    return torch.softmax(x, dim=axis)
def _gelu(x):
    return torch.nn.functional.gelu(x, approximate="tanh")
def _silu(x):
    return torch.nn.functional.silu(x)
def _sigmoid(x):
    return torch.sigmoid(x)
def _layernorm(x, axis=-1, eps=1e-5):
    m = x.mean(dim=axis, keepdim=True)
    v = x.var(dim=axis, keepdim=True, unbiased=False)
    return (x - m) / torch.sqrt(v + eps)
def _scatter_add(tgt, idx, src, axis=0):
    return tgt.clone().index_add_(axis, idx, src)
def _segment_sum(src, seg, n):
    out = torch.zeros((n,) + src.shape[1:], dtype=src.dtype)
    return out.index_add_(0, seg, src)
def _pad(x, pw):
    flat = tuple(v for pair in reversed(pw) for v in pair)
    return torch.nn.functional.pad(x, flat)

kernel_name = 'sequential_preLN__ssm_conv_s4d__geglu_ffn__prompt'

def setup_inputs():

    _w = (lambda a: (lambda t: t.to(torch.bfloat16) if t.is_floating_point() else t)(torch.as_tensor(a)))
    def _A_setup():
        Bsz, L, D, N = 1, 2048, 512, 128
        return {
            "u": _w((lambda *s: torch.randn(*s, dtype=torch.bfloat16) * 0.05)(Bsz, L, D)),
            "log_A_real": _w((lambda *s: torch.randn(*s, dtype=torch.bfloat16) * 6.4)(D, N) * 0.5),
            "A_imag": _w((lambda *s: torch.randn(*s, dtype=torch.bfloat16) * 0.05)(D, N) * 3.14),
            "C_real": _w((lambda *s: torch.randn(*s, dtype=torch.bfloat16) * 0.05)(D, N) / N ** 0.5),
            "C_imag": _w((lambda *s: torch.randn(*s, dtype=torch.bfloat16) * 0.05)(D, N) / N ** 0.5),
            "log_dt": _w((lambda *s: torch.randn(*s, dtype=torch.bfloat16) * 0.05)(D) * 0.5 - 4.0),
            "D_skip": _w((lambda *s: torch.randn(*s, dtype=torch.bfloat16) * 0.05)(D)),
        }
    _A_in = _A_setup()

    def _B_setup():
        B, S, D, F = 1, 2048, 512, 1376
        return {
            "x": _w((lambda *s: torch.randn(*s, dtype=torch.bfloat16) * 0.05)(B, S, D)),
            "w_gate": _w((lambda *s: torch.randn(*s, dtype=torch.bfloat16) * 0.05)(D, F)),
            "w_up": _w((lambda *s: torch.randn(*s, dtype=torch.bfloat16) * 0.05)(D, F)),
            "w_down": _w((lambda *s: torch.randn(*s, dtype=torch.bfloat16) * 0.05)(F, D)),
        }
    _B_in = _B_setup()

    return {
        "A_u": _A_in["u"],
        "A_log_A_real": _A_in["log_A_real"],
        "A_A_imag": _A_in["A_imag"],
        "A_C_real": _A_in["C_real"],
        "A_C_imag": _A_in["C_imag"],
        "A_log_dt": _A_in["log_dt"],
        "A_D_skip": _A_in["D_skip"],
        "B_x": _B_in["x"],
        "B_w_gate": _B_in["w_gate"],
        "B_w_up": _B_in["w_up"],
        "B_w_down": _B_in["w_down"],
    }

def reference(A_u, A_log_A_real, A_A_imag, A_C_real, A_C_imag, A_log_dt, A_D_skip, B_x, B_w_gate, B_w_up, B_w_down):
    def _A_ref(u, log_A_real, A_imag, C_real, C_imag, log_dt, D_skip):
        L = u.shape[1]
        dt = torch.exp(log_dt)
        A = -torch.exp(log_A_real) + 1j * A_imag
        C = (C_real + 1j * C_imag) * dt[:, None]
        pos = (lambda x, dt: x.to(dt))(torch.arange(L), log_dt.dtype)
        P = torch.exp((A * dt[:, None])[:, :, None] * pos[None, None, :])
        K = 2.0 * torch.einsum("dn,dnl->dl", C, P).real
        L2 = 2 * L
        u_t = (lambda x, *d: x.permute(*d))(u, 0, 2, 1)
        Kf = (lambda x, *a, **k: torch.fft.rfft(x.float(), *a, **k))(K, L2)
        Uf = (lambda x, *a, **k: torch.fft.rfft(x.float(), *a, **k))(u_t, L2)
        y = (lambda x, *a, **k: torch.fft.irfft(x, *a, **k).to(torch.bfloat16))(Uf * Kf[None, :, :], L2)[:, :, :L]
        y = (lambda x, *d: x.permute(*d))(y, 0, 2, 1)
        return y + u * D_skip[None, None, :]

    def _B_ref(x, w_gate, w_up, w_down):
        return (_gelu(x @ w_gate) * (x @ w_up)) @ w_down

    x = A_u
    h = x + _A_ref(_layernorm(x, axis=-1), A_log_A_real, A_A_imag, A_C_real, A_C_imag, A_log_dt, A_D_skip)
    h2 = h + _B_ref(_layernorm(h, axis=-1), B_w_gate, B_w_up, B_w_down)
    return h2
```

```python
import re

TRANS = ("v_exp_f32", "v_log_f32", "v_rcp_f32", "v_rsq_f32", "v_sqrt_f32", "v_sin_f32", "v_cos_f32")

def v(i, n=1):
    return f"v{i}" if n == 1 else f"v[{i}:{i+n-1}]"
def a(i, n=1):
    return f"a{i}" if n == 1 else f"a[{i}:{i+n-1}]"
def s(i, n=1):
    return f"s{i}" if n == 1 else f"s[{i}:{i+n-1}]"

_REG = re.compile(r"^-?\|?(?:abs\()?([vas])(?:(\d+)|\[(\d+):(\d+)\])\)?\|?$")

def regs_of(op):
    op = op.strip()
    if op in ("vcc",):
        return [("s", 106), ("s", 107)]
    if op == "vcc_lo": return [("s", 106)]
    if op == "vcc_hi": return [("s", 107)]
    if op == "exec": return [("s", 126), ("s", 127)]
    if op == "exec_lo": return [("s", 126)]
    if op == "exec_hi": return [("s", 127)]
    if op == "m0": return [("s", 124)]
    m = _REG.match(op)
    if not m:
        return []
    k = m.group(1)
    if m.group(2) is not None:
        return [(k, int(m.group(2)))]
    return [(k, i) for i in range(int(m.group(3)), int(m.group(4)) + 1)]

class Ins:
    __slots__ = ("text", "mn", "ops", "mods", "defs", "uses", "kind", "srcC", "srcAB", "cost", "tag")
    def __init__(self, text, tag=None):
        self.text = text
        self.tag = tag
        t = text.split(";")[0].strip()
        self.defs, self.uses = set(), set()
        self.srcC, self.srcAB = set(), set()
        self.cost = 1
        if t.endswith(":") or t.startswith(".") or not t:
            self.mn, self.ops, self.mods, self.kind = t, [], "", "label" if t.endswith(":") else "dir"
            self.cost = 0
            return
        parts = t.split(None, 1)
        mn = parts[0]
        rest = parts[1] if len(parts) > 1 else ""
        ops, cur, depth = [], "", 0
        for ch in rest:
            if ch == "[": depth += 1
            if ch == "]": depth -= 1
            if ch == "," and depth == 0:
                ops.append(cur.strip()); cur = ""
            else:
                cur += ch
        mods = ""
        if cur.strip():
            last = cur.strip().split(None, 1)
            ops.append(last[0])
            mods = last[1] if len(last) > 1 else ""
        base = re.sub(r"_(e32|e64|dpp|sdwa)$", "", mn)
        self.mn, self.ops, self.mods = base, ops, mods
        R = [regs_of(o) for o in ops]
        D, U = self.defs, self.uses
        def d(i): D.update(R[i])
        def u(*idx):
            for i in idx:
                if i < len(R): U.update(R[i])
        allfrom = lambda k: u(*range(k, len(R)))
        if base.startswith("v_mfma"):
            self.kind = "mfma"; d(0); allfrom(1)
            self.srcAB = set(R[1]) | set(R[2]); self.srcC = set(R[3]); self.cost = 2
        elif base.startswith("v_"):
            self.kind = "valu"
            if base in TRANS: self.kind = "trans"; self.cost = 2
            if base.startswith("v_permlane") or base == "v_swap_b32":
                d(0); d(1); u(0, 1); self.cost = 2
            elif base in ("v_add_co_u32", "v_sub_co_u32", "v_addc_co_u32"):
                d(0); d(1); allfrom(2)
            elif base == "v_nop":
                pass
            else:
                d(0); allfrom(1)
                if base in ("v_fmac_f32", "v_dot2c_f32_bf16", "v_writelane_b32") or "dpp" in mn or "row_" in mods or "quad_perm" in mods:
                    u(0)
                if base.startswith("v_cmpx"): D.update(regs_of("exec"))
        elif base.startswith("ds_"):
            self.kind = "ds"
            if base.startswith("ds_read") or base.startswith("ds_bpermute") or base.startswith("ds_permute") or base.startswith("ds_swizzle"):
                d(0); allfrom(1)
            else:
                allfrom(0)
        elif base.startswith("buffer_") or base.startswith("global_"):
            self.kind = "vmem"
            lds = " lds" in (" " + mods) or "_lds_" in base
            if "_load" in base and not lds:
                d(0); allfrom(1)
            else:
                allfrom(0)
            if lds: U.update(regs_of("m0"))
        elif base.startswith("s_load") or base in ("s_memtime", "s_memrealtime"):
            self.kind = "smem"; d(0); allfrom(1)
        elif base.startswith("s_"):
            self.kind = "salu"
            if base.startswith(("s_cmp", "s_cbranch", "s_branch", "s_waitcnt", "s_barrier", "s_nop", "s_sleep", "s_setprio", "s_endpgm", "s_bitcmp")):
                allfrom(0)
                if base in ("s_cbranch_vccz", "s_cbranch_vccnz"): U.update(regs_of("vcc"))
            else:
                d(0); allfrom(1)
                if "saveexec" in base: D.update(regs_of("exec"))
                if base in ("s_addk_i32", "s_mulk_i32"): u(0)
        else:
            raise ValueError("unknown instruction: " + text)
    @property
    def is_valu(self): return self.kind in ("valu", "trans")
    @property
    def is_dpp(self): return self.is_valu and any(k in self.mods for k in ("row_", "quad_perm", "wave_"))
    def states(self):
        if self.kind in ("label", "dir"): return 0
        if self.mn == "s_nop": return int(self.ops[0], 0) + 1
        return 1

class Prog:
    def __init__(self):
        self.l = []
    def __call__(self, text, tag=None):
        for line in text.split("\n"):
            line = line.strip()
            if line:
                self.l.append(Ins(line, tag))
        return self
    def extend(self, other):
        self.l.extend(other.l if isinstance(other, Prog) else other)

def passes(ins):
    return 8 if "32x32" in ins.mn else 4

def need_states(p, c):
    n = 0
    vg = lambda S: {r for r in S if r[0] in "va"}
    sg = lambda S: {r for r in S if r[0] == "s"}
    if p.is_valu:
        ps, pv = sg(p.defs), vg(p.defs)
        if ps:
            if c.kind == "vmem" and ps & c.uses: n = max(n, 5)
            if c.is_valu:
                if c.mn in ("v_readlane_b32", "v_writelane_b32") and ps & set(regs_of(c.ops[2])): n = max(n, 4)
                cu = set(c.uses)
                if c.mn in ("v_cndmask_b32", "v_addc_co_u32") and len(c.ops) < 4: cu |= set(regs_of("vcc"))
                if ps & cu: n = max(n, 2)
            ex = set(regs_of("exec"))
            if ps & ex:
                if c.is_dpp: n = max(n, 5)
                if c.mn.startswith(("v_readlane", "v_readfirstlane", "v_writelane", "v_permlane")) or c.kind == "mfma": n = max(n, 4)
        if pv:
            hit = pv & c.uses
            if hit:
                if c.is_dpp: n = max(n, 2)
                if c.mn in ("v_readlane_b32", "v_readfirstlane_b32"): n = max(n, 1)
                if c.mn.startswith("v_permlane"): n = max(n, 2)
                if c.kind == "mfma": n = max(n, 2)
                if p.kind == "trans" and c.kind != "trans": n = max(n, 1)
                if "sdwa" in p.text and c.is_valu: n = max(n, 1)
            if p.mn.startswith("v_dot"):
                if c.mn == p.mn:
                    ab = set(regs_of(c.ops[1])) | set(regs_of(c.ops[2]))
                    if pv & ab: n = max(n, 3)
                elif pv & (c.uses | c.defs): n = max(n, 3)
    if p.kind == "salu" and ("s", 124) in p.defs and c.kind == "vmem" and ("s", 124) in c.uses:
        n = max(n, 1)
    if p.kind == "mfma":
        big = passes(p) == 8
        if c.kind == "mfma":
            if p.defs & c.srcAB: n = max(n, 12 if big else 8)
            if p.defs & c.srcC and p.defs != c.srcC: n = max(n, 10 if big else 6)
            if p.defs & c.defs and not (p.defs & c.srcC): n = max(n, 10 if big else 6)
        elif c.kind in ("valu", "trans", "ds", "vmem"):
            if p.defs & (c.uses | c.defs): n = max(n, 12 if big else 8)
            if c.is_valu and p.srcC & c.defs: n = max(n, 7 if big else 3)
    if p.kind == "vmem" and ("store_dwordx4" in p.mn or "store_dwordx3" in p.mn):
        data = set(regs_of(p.ops[0] if p.mn.startswith("buffer") else p.ops[1]))
        if data & c.defs: n = max(n, 2)
    return n

def insert_waits(l):
    out, vm, lg = [], [], []
    for c in l:
        if c.mn == "s_waitcnt":
            m = re.search(r"vmcnt\((\d+)\)", c.text)
            if m:
                k = int(m.group(1)); vm = vm[len(vm) - k:] if k else []
            m = re.search(r"lgkmcnt\((\d+)\)", c.text)
            if m:
                k = int(m.group(1))
                if k == 0: lg = []
                elif not any(x[1] for x in lg): lg = lg[len(lg) - k:] if len(lg) > k else lg
            out.append(c); continue
        touch = c.uses | c.defs
        wv = wl = None
        for i in range(len(vm) - 1, -1, -1):
            if vm[i][0] & touch:
                wv = len(vm) - 1 - i; break
        for i in range(len(lg) - 1, -1, -1):
            if lg[i][0] & touch:
                wl = 0 if any(x[1] for x in lg) else len(lg) - 1 - i; break
        if wv is not None or wl is not None:
            t = "s_waitcnt"
            if wv is not None:
                wv = min(wv, 63); t += f" vmcnt({wv})"; vm = vm[len(vm) - wv:] if wv else []
            if wl is not None:
                wl = min(wl, 15); t += f" lgkmcnt({wl})"; lg = lg[len(lg) - wl:] if wl else []
            out.append(Ins(t))
        out.append(c)
        if c.kind == "vmem": vm.append((set(c.defs), False))
        elif c.kind == "ds": lg.append((set(c.defs), False))
        elif c.kind == "smem": lg.append((set(c.defs), True))
    return out

def insert_nops(l):
    out = []
    for c in l:
        if c.kind not in ("label", "dir"):
            dist, need = 0, 0
            for p in reversed(out):
                if dist >= 12: break
                n = need_states(p, c) if p.kind not in ("label", "dir") else 0
                need = max(need, n - dist)
                dist += p.states()
            if need > 0:
                out.append(Ins(f"s_nop {need-1}"))
        out.append(c)
    return out

def weave(main, fill, budget=2, start=0, stop=None):
    main = main.l if isinstance(main, Prog) else main
    fill = list(fill.l if isinstance(fill, Prog) else fill)
    out, fi, nm, i = [], 0, 0, 0
    credit = 0.0
    while i < len(main):
        c = main[i]; out.append(c); i += 1
        if c.kind == "mfma":
            nm += 1
            used = 0
            while i < len(main) and main[i].kind != "mfma":
                out.append(main[i]); used += main[i].cost; i += 1
            if nm > start and (stop is None or nm <= stop):
                credit = min(credit, 1.0) + budget - used
                while fi < len(fill) and fill[fi].cost <= credit + 1e-9:
                    out.append(fill[fi]); credit -= fill[fi].cost; fi += 1
    out.extend(fill[fi:])
    return out

def render(l):
    return "\n".join((i.text if i.kind == "label" else "    " + i.text) for i in l) + "\n"
```

```python
import sys, math, struct
from asmlib import *

NAME = "sequential_preLN__ssm_conv_s4d__geglu_ffn__prompt"
STAMPS = "--stamps" in sys.argv
OUT = [x for x in sys.argv[1:] if not x.startswith("--")][0]

def f2u(x): return struct.unpack("<I", struct.pack("<f", x))[0]

W_EP, W_ST, W_FL, W_CS = 0, 0x1000, 0x8000, 0x10000
W_XT, W_HT, W_P1, W_P2, W_ACT, W_STAMP = 0x100000, 0x500000, 0x700000, 0xA00000, 0xC00000, 0x1800000
L_TAB, TROW, TCH = 0, 544, 64 * 544
L_KR, CS_ = 69632, 4160
L_U, L_X = 104448, 104448 + 9216
L_YP = 32768
L_KC, KCH = 131072, 3840
L_WS1, L_WS2 = 131072 + 7680, 131072 + 7680 + 12288
L_CT = 131072
L_PP = 131072 + 4096
LDS_BYTES = 163840
assert L_WS2 + 8192 <= LDS_BYTES and L_X + 8192 <= 131072 and L_KR + 8 * CS_ <= L_U

WS, XP, OUTP = "s[42:43]", "s[16:17]", "s[38:39]"
S_W, S_TAG, S_DT, S_DS, S_CG, S_RG, S_OG, S_TS, S_SPIN = "s3", "s52", "s53", "s54", "s55", "s56", "s57", "s58", "s59"
S_MASK = "s60"
SPIN_MAX = 20000

P = Prog()
nstamp = [0]
def stamp(p=None):
    if STAMPS:
        k = nstamp[0]; nstamp[0] += 1
        (p or P)(f"s_memrealtime s[{64+2*k}:{65+2*k}]")

def cmul(p, z, x, y, t):
    p(f"v_pk_mul_f32 {v(t,2)}, {v(x,2)}, {v(y,2)} op_sel:[0,0] op_sel_hi:[0,1]")
    p(f"v_pk_fma_f32 {v(z,2)}, {v(x,2)}, {v(y,2)}, {v(t,2)} op_sel:[1,1,0] op_sel_hi:[1,0,1] neg_lo:[1,0,0]")

P("s_cmp_ge_u32 s2, 256\ns_cbranch_scc1 L_end")
P("s_load_dwordx16 s[16:31], s[0:1], 0\ns_load_dwordx8 s[32:39], s[0:1], 64\ns_load_dwordx4 s[40:43], s[0:1], 96")
stamp()
P("v_and_b32 v1, 63, v0\nv_lshrrev_b32 v2, 6, v0\nv_readfirstlane_b32 s3, v2")
P("s_lshl_b32 s4, s3, 19\ns_lshl_b32 s5, s2, 11\ns_add_u32 s5, s5, s4")
P("v_lshl_add_u32 v2, v1, 4, s5")
P("s_lshr_b32 s6, s2, 5\ns_bfe_u32 s7, s2, 0x20003\ns_and_b32 s8, s2, 7")
P("s_lshl_b32 s9, s6, 16\ns_add_u32 s9, s9, s4\ns_lshl_b32 s10, s7, 11\ns_add_u32 s9, s9, s10\ns_lshl_b32 s10, s8, 7\ns_add_u32 s9, s9, s10")
P("v_and_b32 v5, 7, v1\nv_lshrrev_b32 v6, 3, v1")
P("v_lshlrev_b32 v3, 13, v5\nv_lshl_add_u32 v3, v6, 4, v3\nv_add_u32 v3, s9, v3")
P("s_lshl_b32 s10, s2, 9\nv_lshl_add_u32 v4, v0, 1, s10")
P("s_lshl_b32 s11, s2, 2")
P("s_waitcnt lgkmcnt(0)")
P(f"global_load_dwordx4 v[8:11], v2, {XP}\nglobal_load_dwordx4 v[12:15], v2, {XP} offset:1024")
P(f"global_load_dwordx4 v[16:19], v3, {XP}\nglobal_load_dwordx4 v[20:23], v3, {XP} offset:1024")
P("global_load_ushort v24, v4, s[18:19]\nglobal_load_ushort v25, v4, s[20:21]\nglobal_load_ushort v26, v4, s[22:23]\nglobal_load_ushort v27, v4, s[24:25]")
P(f"s_load_dword {S_TAG}, {WS}, {W_EP}\ns_load_dword {S_DT}, s[26:27], s11\ns_load_dword {S_DS}, s[28:29], s11")
P(f"s_mov_b32 {S_MASK}, 0xffff0000")
P("s_cmp_ge_u32 s3, 2\ns_cselect_b32 s44, s34, s32\ns_cselect_b32 s45, s35, s33\ns_mov_b32 s46, 1409024\ns_mov_b32 s47, 0x20000")
P("s_mov_b32 s48, s36\ns_mov_b32 s49, s37\ns_mov_b32 s50, 1409024\ns_mov_b32 s51, 0x20000")
P("s_and_b32 s12, s2, 15\ns_lshr_b32 s13, s2, 4")
P("s_mul_i32 s14, s13, 88064\ns_mul_i32 s15, s12, 172\ns_add_u32 s14, s14, s15")
P("s_and_b32 s15, s3, 1\ns_mul_i32 s15, s15, 192")
P(f"s_mul_i32 s61, s3, 3072\ns_add_u32 s61, s61, {L_WS1}")
P("s_movk_i32 s62, 745\ns_movk_i32 s63, 2576")
for j in range(3):
    P(f"v_add_u32 v28, s15, v1")
    if j: P(f"v_add_u32 v28, {64*j}, v28")
    P("v_mul_u32_u24 v29, s62, v28\nv_lshrrev_b32 v29, 13, v29")
    P("v_mul_u32_u24 v29, s63, v29\nv_lshl_add_u32 v29, v28, 4, v29")
    P("v_add_u32 v29, s14, v29")
    P("v_cmp_gt_u32 vcc, 0x160, v28\nv_cndmask_b32 v29, 2.0, v29, vcc")
    P(f"s_add_u32 m0, s61, {1024*j}")
    P("buffer_load_dwordx4 v29, s[44:47], 0 offen lds")
P("v_mov_b32 v32, -1\nv_mov_b32 v33, -1\nv_mov_b32 v34, -1\nv_mov_b32 v35, -1")
P(f"s_lshl_b32 s10, s2, 7\ns_add_u32 s10, s10, s4\ns_add_u32 s10, s10, {W_HT}")
P("v_lshlrev_b32 v28, 15, v6\nv_lshl_add_u32 v28, v5, 4, v28\nv_add_u32 v28, s10, v28\nv_add_u32 v29, 0x40000, v28")
P(f"global_store_dwordx4 v28, v[32:35], {WS} sc1\nglobal_store_dwordx4 v29, v[32:35], {WS} sc1")
P("s_lshr_b32 s10, s2, 2\ns_lshl_b32 s10, s10, 2\ns_add_u32 s10, s10, s3")
P("s_mul_i32 s11, s10, 745\ns_lshr_b32 s11, s11, 13\ns_mul_i32 s15, s11, 11\ns_sub_u32 s15, s10, s15")
P("s_mul_i32 s61, s15, 43\ns_lshr_b32 s61, s61, 7\ns_mul_i32 s62, s61, 3\ns_sub_u32 s62, s15, s62")
P("s_mul_i32 s61, s61, 24\ns_lshl_b32 s63, s62, 2\ns_cmp_eq_u32 s62, 2\ns_cselect_b32 s63, 16, s63\ns_cselect_b32 s62, 4, 8\ns_add_u32 s61, s61, s63")
P("v_lshrrev_b32 v28, 4, v1\nv_lshrrev_b32 v29, 5, v1\nv_xor_b32 v28, v28, v29\nv_add_u32 v28, s61, v28")
P("s_mul_i32 s11, s11, 86\ns_and_b32 s15, s2, 3\ns_lshl_b32 s15, s15, 8\ns_lshl_b32 s11, s11, 10\ns_add_u32 s11, s11, s15")
P("s_cmp_lt_u32 s2, 176\ns_cselect_b32 s63, 86, 0")
P("v_and_b32 v30, 15, v1\nv_lshl_add_u32 v30, v30, 4, s11")
P(f"s_lshl_b32 s15, s3, 11\ns_add_u32 s15, s15, {L_WS2}")
for j in range(2):
    if j: P("v_add_u32 v28, s62, v28")
    P("v_lshl_add_u32 v29, v28, 10, v30\nv_cmp_gt_u32 vcc, s63, v28\nv_cndmask_b32 v29, 2.0, v29, vcc")
    P(f"s_add_u32 m0, s15, {1024*j}")
    P("buffer_load_dwordx4 v29, s[48:51], 0 offen lds")
P(f"s_lshr_b32 s10, s2, 3\ns_and_b32 s11, s2, 3\ns_lshl_b32 s11, s11, 2\ns_and_b32 s15, s10, 3\ns_add_u32 {S_CG}, s11, s15")
P(f"s_bfe_u32 s11, s2, 0x10002\ns_lshl_b32 s11, s11, 3\ns_lshr_b32 s15, s10, 2\ns_add_u32 {S_RG}, s11, s15")
P(f"s_and_b32 {S_OG}, {S_CG}, 7\ns_lshr_b32 {S_TS}, {S_CG}, 3")
P(f"s_lshl_b32 s10, s3, 4\ns_add_u32 s10, s10, {S_RG}\ns_mul_i32 s10, s10, 90112\ns_mul_i32 s11, {S_CG}, 2816\ns_add_u32 s10, s10, s11\ns_add_u32 s10, s10, {W_ACT}")
P("v_lshl_add_u32 v28, v1, 4, s10\nv_add_u32 v29, 45056, v28")
for r in ("v28", "v29"):
    for o in (0, 1024, 1792):
        P(f"global_store_dwordx4 {r}, v[32:35], {WS} offset:{o} sc1")
P("v_mov_b32 v36, 0\nv_mov_b32 v37, 0\nv_mov_b32 v38, 0\nv_mov_b32 v39, 0")
P(f"v_lshrrev_b32 v28, 5, v1\nv_mul_u32_u24 v28, 4608, v28\nv_and_b32 v29, 31, v1\nv_lshl_add_u32 v28, v29, 4, v28")
P(f"v_add_u32 v28, {L_U}, v28\nds_write_b128 v28, v[36:39]")
P(f"v_bfe_u32 v28, v1, 1, 3\nv_mul_u32_u24 v28, {CS_}, v28\nv_and_b32 v29, 1, v1\nv_lshl_add_u32 v28, v29, 4, v28")
P(f"v_add_u32 v28, {L_KR+4096}, v28\nds_write_b128 v28, v[36:39]")
P(f"v_mul_u32_u24 v28, {KCH}, v29\nv_add_u32 v28, {L_KC+956*4}, v28\nds_write_b32 v28, v36")

GA = 100
P("v_and_b32 v28, 127, v0\nv_lshlrev_b32 v28, 4, v28\nv_sub_u32 v28, 0x7ff, v28")
P("s_lshr_b32 s10, s3, 1")
def padc(off): return -(off + 4 * (off >> 4)) * 4
P(f"s_mul_i32 s10, s10, {KCH}\ns_add_u32 s10, s10, {L_KC}\ns_add_u32 s11, s10, {(padc(0x4280)) & 0xffffffff}\ns_add_u32 s15, s10, {(padc(0x4300)) & 0xffffffff}")
P("v_mov_b32 v40, s11\nv_mov_b32 v41, s15\nv_mov_b32 v42, 0x80")
for part, (m0_, m1_) in enumerate(((0, 16), (16, 19))):
    if part: P("v_subrev_u32 v28, 16, v28")
    P("v_cmp_gt_i32 vcc, 0x80, v28\nv_cndmask_b32 v29, 0, v42, vcc\nv_cndmask_b32 v30, v40, v41, vcc\nv_add_u32 v29, v29, v28\nv_cvt_f32_i32 v29, v29")
    for m in range(m0_, m1_, 2):
        k = m - m0_
        P(f"v_add_f32 v43, {float(-k)}, v29" if k in (0, 2, 4) and k else (f"v_mov_b32 v43, v29" if k == 0 else f"v_add_f32 v43, 0x{f2u(-k):x}, v29"))
        P(f"v_add_f32 v44, -1.0, v43\nv_cvt_pk_bf16_f32 v43, v43, v44")
        P(f"v_and_b32 v44, 0xffff, v43\nv_bfe_u32 v45, v43, 4, 12\nv_lshl_add_u32 v44, v45, 2, v44\nv_lshl_add_u32 {v(GA+m)}, v44, 2, v30")
        if m + 1 < m1_:
            P(f"v_lshrrev_b32 v44, 16, v43\nv_lshrrev_b32 v45, 20, v43\nv_lshl_add_u32 v44, v45, 2, v44\nv_lshl_add_u32 {v(GA+m+1)}, v44, 2, v30")
P(f"s_add_u32 s11, s10, {956*4}\nv_mov_b32 v29, s11\nv_cmp_gt_i32 vcc, 0, v28")
for m in (16, 17, 18): P(f"v_cndmask_b32 {v(GA+m)}, {v(GA+m)}, v29, vcc")

P("s_waitcnt lgkmcnt(0)")
P(f"s_add_u32 {S_TAG}, {S_TAG}, 0x9e3779b9")
P(f"s_lshl_b32 s10, s8, 19\ns_lshl_b32 s11, s3, 12\ns_add_u32 s10, s10, s11\ns_lshl_b32 s11, s7, 10\ns_add_u32 s10, s10, s11\ns_lshl_b32 s11, s6, 7\ns_add_u32 s10, s10, s11\ns_add_u32 s10, s10, {W_XT}")
P("v_lshlrev_b32 v28, 16, v6\nv_lshl_add_u32 v28, v5, 4, v28\nv_add_u32 v28, s10, v28")
P("v_add_u32 v29, 0x4000, v28\nv_add_u32 v30, 0x8000, v28\nv_add_u32 v31, 0xc000, v28")
for j in range(4):
    P(f"v_mov_b32 {v(49+4*j)}, {S_TAG}\nv_mov_b32 {v(51+4*j)}, {S_TAG}")
stamp()
for j in range(4):
    P(f"v_mov_b32 {v(48+4*j)}, {v(16+j)}\nv_mov_b32 {v(50+4*j)}, {v(20+j)}")
    P(f"global_store_dwordx4 {v(28+j)}, {v(48+4*j,4)}, {WS} sc1")
P("s_mov_b32 s10, 0x3f803f80")
P("v_mov_b32 v40, 0\nv_mov_b32 v41, 0\nv_mov_b32 v42, 0\nv_mov_b32 v43, 0")
for j in range(4):
    P(f"v_dot2_f32_bf16 v40, {v(8+j)}, s10, v40\nv_dot2_f32_bf16 v41, {v(8+j)}, {v(8+j)}, v41")
    P(f"v_dot2_f32_bf16 v42, {v(12+j)}, s10, v42\nv_dot2_f32_bf16 v43, {v(12+j)}, {v(12+j)}, v43")
P("v_permlane32_swap_b32 v40, v41\nv_permlane32_swap_b32 v42, v43\nv_add_f32 v40, v40, v41\nv_add_f32 v42, v42, v43")
P("v_permlane16_swap_b32 v40, v42\nv_add_f32 v40, v40, v42")
for r in (8, 4, 2, 1):
    P(f"v_add_f32_dpp v40, v40, v40 row_ror:{r} row_mask:0xf bank_mask:0xf")
P("v_permlane32_swap_b32 v40, v41")
def ln_stats(p, s1, s2, t0, t1):
    p(f"v_mul_f32 {s1}, 0x3b000000, {s1}\nv_mul_f32 {s2}, 0x3b000000, {s2}\nv_fma_f32 {s2}, -{s1}, {s1}, {s2}\nv_max_f32 {s2}, 0, {s2}")
    p(f"v_cvt_pk_bf16_f32 {t0}, {s1}, {s2}\nv_lshlrev_b32 {s1}, 16, {t0}\nv_and_b32 {s2}, {S_MASK}, {t0}")
    p(f"v_add_f32 {s2}, 0x{f2u(1e-5):x}, {s2}\nv_cvt_pk_bf16_f32 {t0}, {s2}, {s2}\nv_and_b32 {s2}, {S_MASK}, {t0}")
    p(f"v_sqrt_f32 {s2}, {s2}\nv_cvt_pk_bf16_f32 {t0}, {s2}, {s2}\nv_and_b32 {s2}, {S_MASK}, {t0}")
ln_stats(P, "v40", "v41", "v42", "v43")
P("v_rcp_f32 v44, v41")
P("v_readlane_b32 s10, v40, 16\nv_readlane_b32 s11, v44, 16")
P(f"v_lshrrev_b32 v46, 16, v40\nv_or_b32 v46, s10, v46\nv_mov_b32 v45, s11\nv_mov_b32 v47, {S_TAG}")
P(f"s_lshl_b32 s10, s3, 12\ns_and_b32 s11, s2, 3\ns_lshl_b32 s11, s11, 10\ns_add_u32 s10, s10, s11\ns_lshr_b32 s11, s2, 2\ns_lshl_b32 s11, s11, 4\ns_add_u32 s10, s10, s11\ns_add_u32 s10, s10, {W_ST}")
P("v_mov_b32 v28, s10")
P("s_waitcnt vmcnt(4)")
P(f"s_mov_b64 exec, 1\nglobal_store_dwordx4 v28, v[44:47], {WS} sc1\ns_mov_b64 exec, -1")
stamp()

P("s_barrier")
P("v_lshrrev_b32 v28, 2, v1\nv_mul_u32_u24 v28, 176, v28\nv_and_b32 v29, 1, v1\nv_mul_u32_u24 v29, 6144, v29\nv_bfe_u32 v30, v1, 1, 1")
P(f"v_lshl_add_u32 v28, v30, 3, v28\ns_mul_i32 s10, s3, 48\ns_add_u32 s10, s10, {L_WS1}\nv_add3_u32 v28, v28, v29, s10")
for T in range(3):
    P(f"ds_read_b64_tr_b16 {v(64+4*T,2)}, v28 offset:{16*T}\nds_read_b64_tr_b16 {v(66+4*T,2)}, v28 offset:{16*T+16*176}")
P("v_lshrrev_b32 v29, 4, v1\nv_bfe_u32 v30, v1, 2, 2\nv_lshl_add_u32 v29, v29, 3, v30\nv_and_b32 v30, 3, v1\nv_lshlrev_b32 v30, 3, v30\nv_lshl_add_u32 v29, v29, 8, v30")
P(f"s_lshl_b32 s10, s3, 6\ns_add_u32 s10, s10, {L_WS2}\nv_add_u32 v29, s10, v29")
for k in range(2):
    P(f"ds_read_b64_tr_b16 {v(76+4*k,2)}, v29 offset:{32*k}\nds_read_b64_tr_b16 {v(78+4*k,2)}, v29 offset:{32*k+1024}")
P("s_mov_b32 vcc_lo, 0xc3c3c3c3\ns_mov_b32 vcc_hi, 0xc3c3c3c3")
for r in range(64, 76):
    P(f"v_cndmask_b32_dpp {v(r+20)}, {v(r)}, {v(r)}, vcc row_half_mirror row_mask:0xf bank_mask:0xf")
P("s_mov_b32 s10, 0xf000f000\ns_cmp_eq_u32 s3, 3\ns_cselect_b32 s10, s10, 0\ns_mov_b32 s11, s10\nv_mov_b32 v60, 0x3f803f80\nv_mov_b32 v61, v60\nv_mov_b32 v62, v60\nv_mov_b32 v63, v60")
for r in range(88, 92): P(f"v_cndmask_b32 {v(r)}, {v(r)}, v60, s[10:11]")
for T in range(3):
    P(f"v_mfma_f32_16x16x32_bf16 {v(64+4*T,4)}, v[60:63], {v(84+4*T,4)}, 0")
P(f"s_mul_i32 s10, s12, 11\ns_mul_i32 s11, s3, 3\ns_add_u32 s10, s10, s11\ns_lshl_b32 s11, s10, 14\ns_lshl_b32 s15, s13, 10\ns_add_u32 s11, s11, s15\ns_add_u32 s11, s11, {W_P1}")
P("v_lshl_add_u32 v28, v1, 4, s11\nv_add_u32 v30, 0x4000, v28\nv_add_u32 v31, 0x8000, v28")
P(f"global_store_dwordx4 v28, v[84:87], {WS} sc1\nglobal_store_dwordx4 v30, v[88:91], {WS} sc1")
P(f"s_lshl_b32 s10, s10, 10\ns_lshl_b32 s15, s13, 6\ns_add_u32 s10, s10, s15\ns_add_u32 s10, s10, {W_CS}\nv_lshl_add_u32 v29, v1, 2, s10")
for T in range(3):
    r = 64 + 4 * T
    P(f"v_cvt_pk_bf16_f32 {v(r+1)}, {v(r)}, {v(r)}\nv_lshlrev_b32 {v(r+2)}, 16, {v(r+1)}\nv_sub_f32 {v(r+2)}, {v(r)}, {v(r+2)}\nv_cvt_pk_bf16_f32 {v(r+1)}, {v(r)}, {v(r+2)}")
P("s_mov_b64 exec, 0xffff")
P(f"global_store_dword v29, v65, {WS} sc1\nglobal_store_dword v29, v69, {WS} offset:1024 sc1")
P("s_cmp_eq_u32 s3, 3\ns_cbranch_scc1 L_pp1")
P(f"global_store_dword v29, v73, {WS} offset:2048 sc1\ns_mov_b64 exec, -1\nglobal_store_dwordx4 v31, v[92:95], {WS} sc1")
P("L_pp1:\ns_mov_b64 exec, -1")
P("s_cmp_ge_u32 s2, 176\ns_cbranch_scc1 L_pp2")
P("s_lshr_b32 s10, s2, 2\ns_mul_i32 s11, s10, 745\ns_lshr_b32 s11, s11, 13")
P("s_and_b32 s15, s2, 3\ns_lshl_b32 s15, s15, 1\ns_lshr_b32 s61, s3, 1\ns_add_u32 s15, s15, s61")
P(f"s_mul_i32 s15, s15, 44\ns_add_u32 s15, s15, s10\ns_lshl_b32 s15, s15, 12\ns_add_u32 s15, s15, {W_P2}")
P("s_lshl_b32 s61, s3, 1\ns_sub_u32 s61, s61, s11")
for k in range(2):
    P(f"s_add_u32 s62, s61, {k}\ns_and_b32 s62, s62, 3\ns_lshl_b32 s62, s62, 10\ns_add_u32 s62, s62, s15\nv_lshl_add_u32 v28, v1, 4, s62")
    P(f"global_store_dwordx4 v28, {v(76+4*k,4)}, {WS} sc1")
P("L_pp2:")
stamp()

L2E, L2E_LO, LN2 = 0x3fb8aa3b, 0x32a57060, 0x3f317218
P(f"s_lshl_b32 s10, {S_DT}, 16\ns_and_b32 s11, {S_DT}, {S_MASK}\ns_cmp_ge_u32 s3, 2\ns_cselect_b32 s10, s11, s10")
P(f"s_mov_b32 s11, 0x{L2E:x}")
P("v_lshlrev_b32 v24, 16, v24\nv_lshlrev_b32 v25, 16, v25\nv_lshlrev_b32 v26, 16, v26\nv_lshlrev_b32 v27, 16, v27\nv_mov_b32 v28, s10")
for x, h, l in ((24, 30, 31), (28, 32, 33)):
    P(f"v_mul_f32 {v(h)}, s11, {v(x)}\nv_fma_f32 {v(l)}, {v(x)}, s11, -{v(h)}\nv_fmac_f32 {v(l)}, 0x{L2E_LO:x}, {v(x)}")
    P(f"v_exp_f32 {v(h)}, {v(h)}\nv_mul_f32 {v(l)}, 0x{LN2:x}, {v(l)}\nv_fma_f32 {v(h)}, {v(h)}, {v(l)}, {v(h)}")
P(f"v_cvt_pk_bf16_f32 v30, v30, v32\nv_and_b32 v32, {S_MASK}, v30\nv_lshlrev_b32 v30, 16, v30")
P("v_mul_f32 v30, v30, v32\nv_mul_f32 v30, -s11, v30\nv_mul_f32 v31, v25, v32\nv_mul_f32 v31, 0.15915494, v31")
P("v_add_f32 v32, v32, v32\nv_mul_f32 v34, v26, v32\nv_mul_f32 v35, v27, v32")
EB = {1: 36, 16: 38, 256: 40}
for p_, r in EB.items():
    c = f"0x{f2u(float(p_)):x}"
    P(f"v_mul_f32 v42, {c}, v30\nv_mul_f32 v43, {c}, v31\nv_fract_f32 v43, v43\nv_exp_f32 v42, v42\nv_cos_f32 {v(r)}, v43\nv_sin_f32 {v(r+1)}, v43")
    P(f"v_pk_mul_f32 {v(r,2)}, {v(r,2)}, v[42:43] op_sel_hi:[1,0]")
P(f"s_lshr_b32 s10, s3, 1\ns_mul_i32 s10, s10, {TCH}\nv_and_b32 v29, 127, v0\nv_lshl_add_u32 v29, v29, 2, s10")
def put(row, r, conj=False):
    t = 44 + (put.n & 3); put.n += 1
    P(f"v_cvt_pk_bf16_f32 {v(t)}, {v(r)}, {'-' if conj else ''}{v(r+1)}\nds_write_b32 v29, {v(t)} offset:{L_TAB+row*TROW}")
put.n = 0
E0 = lambda i: 48 + 2 * i
G = lambda g: 80 + 2 * g
P(f"v_mov_b32 {v(E0(0))}, 1.0\nv_mov_b32 {v(E0(0)+1)}, 0\nv_mov_b32 {v(E0(1))}, v36\nv_mov_b32 {v(E0(1)+1)}, v37\nv_mov_b32 {v(G(1))}, v40\nv_mov_b32 {v(G(1)+1)}, v41")
put(0, 34, True); put(16, E0(0)); put(17, E0(1)); put(32, G(1))
grow = {2: 40, 3: 44, 4: 48, 5: 50, 6: 52, 7: 54, 8: 56}
for i in range(1, 16):
    cmul(P, 34, 34, 38, 24)
    if i >= 2: cmul(P, E0(i), E0(i - 1), 36, 26)
    if 2 <= i <= 8: cmul(P, G(i), G(i - 1), 40, 32)
    put(i, 34, True)
    if i >= 2: put(16 + i, E0(i))
    if 2 <= i <= 8: put(grow[i], G(i))
extra = [(32 + e, 1, 2 * e) for e in range(1, 8)] + [(40 + e, 2, 4 * e) for e in range(1, 4)] + [(44 + e, 3, 4 * e) for e in range(1, 4)] + [(49 + 2 * g, 4 + g, 8) for g in range(4)]
for k, (row, g, e) in enumerate(extra):
    z = 34 + 2 * (k & 1)
    cmul(P, z, G(g), E0(e), 24 + 2 * (k & 1)); put(row, z)
P(f"s_lshl_b32 s10, s12, 8\ns_lshl_b32 s11, s3, 6\ns_add_u32 s10, s10, s11\ns_lshl_b32 s11, s13, 2\ns_add_u32 s10, s10, s11\ns_add_u32 s10, s10, {W_FL}")
P(f"v_mov_b32 v28, s10\nv_mov_b32 v30, {S_TAG}\ns_waitcnt vmcnt(0)")
P(f"s_mov_b64 exec, 1\nglobal_store_dword v28, v30, {WS} sc1\ns_mov_b64 exec, -1")
P("s_waitcnt lgkmcnt(0)\ns_barrier")
stamp()
P("v_and_b32 v2, 15, v1\nv_lshrrev_b32 v3, 4, v1")
P(f"s_lshr_b32 s10, s3, 1\ns_mul_i32 s11, s10, {TCH}\nv_mul_u32_u24 v28, {TROW}, v2\nv_lshl_add_u32 v28, v3, 4, v28\nv_add_u32 v28, s11, v28")
P(f"s_mul_i32 s10, s10, {KCH}\ns_add_u32 s10, s10, {L_KC}")
for k in range(8): P(f"ds_read_b128 {v(32+4*k,4)}, v28 offset:{64*k}")
P("s_bitcmp1_b32 s3, 0\ns_cbranch_scc1 L_km1")
for t in range(2):
    for k in range(8): P(f"ds_read_b128 {v(128+32*t+4*k,4)}, v28 offset:{(1+t)*16*TROW+64*k}")
for k in range(8):
    for t in range(2):
        P(f"v_mfma_f32_16x16x32_bf16 {v(64+4*t,4)}, {v(128+32*t+4*k,4)}, {v(32+4*k,4)}, {v(64+4*t,4) if k else 0}")
P("v_mul_u32_u24 v29, 80, v2\nv_lshl_add_u32 v29, v3, 4, v29\nv_add_u32 v29, s10, v29")
P("v_lshlrev_b32 v30, 3, v2\nv_lshl_add_u32 v30, v3, 2, v30\nv_lshlrev_b32 v31, 2, v2\nv_lshl_add_u32 v31, v3, 6, v31\nv_cmp_gt_u32 vcc, 2, v3\nv_cndmask_b32 v30, v31, v30, vcc")
P(f"v_lshrrev_b32 v31, 4, v30\nv_lshl_add_u32 v30, v31, 2, v30\nv_lshl_add_u32 v30, v30, 2, s10")
P(f"ds_write_b128 v29, v[64:67]\nds_write_b128 v30, v[68:71] offset:{320*4}")
P("s_branch L_km2\nL_km1:")
for k in range(8): P(f"ds_read_b128 {v(128+4*k,4)}, v28 offset:{3*16*TROW+64*k}")
P("s_waitcnt lgkmcnt(0)")
for k in range(8):
    P(f"v_mfma_f32_16x16x32_bf16 v[64:67], {v(128+4*k,4)}, {v(32+4*k,4)}, {'v[64:67]' if k else 0}")
P("v_lshlrev_b32 v30, 1, v2\nv_lshl_add_u32 v30, v3, 6, v30\nv_lshrrev_b32 v31, 4, v30\nv_lshl_add_u32 v30, v31, 2, v30\nv_lshl_add_u32 v30, v30, 2, s10")
P(f"ds_write_b64 v30, v[64:65] offset:{640*4}\nds_write_b64 v30, v[66:67] offset:{680*4}")
P("L_km2:\ns_waitcnt lgkmcnt(0)\ns_barrier")
for m in range(19): P(f"ds_read_b32 {v(32+m)}, {v(GA+m)}")
P(f"s_lshr_b32 s10, s3, 1\ns_mul_i32 s10, s10, {4*CS_}\ns_add_u32 s10, s10, {L_KR}\nv_and_b32 v28, 127, v0\nv_lshl_add_u32 v28, v28, 5, s10")
for c in range(4):
    for d in range(8):
        P(f"v_cvt_pk_bf16_f32 {v(64+8*c+d)}, {v(32+c+2*d)}, {v(33+c+2*d)}")
    P(f"ds_write_b128 v28, {v(64+8*c,4)} offset:{c*CS_}\nds_write_b128 v28, {v(68+8*c,4)} offset:{c*CS_+16}")
P("s_waitcnt lgkmcnt(0)\ns_barrier")
P(f"s_and_b32 s11, s3, 1\ns_lshl_b32 s11, s11, 8\ns_add_u32 s10, s10, s11")
P(f"v_sub_u32 v28, 15, v2\nv_and_b32 v29, 3, v28\nv_mul_u32_u24 v29, {CS_}, v29\nv_and_b32 v28, 12, v28\nv_lshl_add_u32 v28, v28, 1, v29\nv_lshl_add_u32 v28, v3, 4, v28\nv_add_u32 v28, s10, v28")
AF = lambda sg, r: 128 + (sg * 4 + r) * 4
for sg in range(8):
    for r in range(4):
        o = 512 * (7 - sg) + 64 * r
        P(f"ds_read_b64 {v(AF(sg,r),2)}, v28 offset:{o}\nds_read_b64 {v(AF(sg,r)+2,2)}, v28 offset:{o+8}")
stamp()

P(f"s_lshl_b32 s10, s2, 14\ns_lshl_b32 s11, s3, 12\ns_add_u32 s10, s10, s11\ns_add_u32 s10, s10, {W_XT}\ns_add_u32 s11, s11, {W_ST}")
P("v_lshl_add_u32 v28, v1, 4, s10\nv_lshl_add_u32 v29, v1, 4, s11")
P(f"s_lshl_b32 s10, {S_CG}, 8\ns_lshl_b32 s11, s3, 6\ns_add_u32 s10, s10, s11\ns_add_u32 s10, s10, {W_FL}\nv_lshl_add_u32 v30, v2, 2, s10")
P(f"s_mov_b32 {S_SPIN}, 0\nL_sw1:")
for i in range(4): P(f"global_load_dwordx4 {v(32+4*i,4)}, v28, {WS} offset:{1024*i} sc1")
for i in range(4): P(f"global_load_dwordx4 {v(48+4*i,4)}, v29, {WS} offset:{1024*i} sc1")
P(f"global_load_dword v64, v30, {WS} sc1")
P(f"v_xor_b32 v65, {S_TAG}, v35")
for r in (39, 43, 47, 51, 55, 59, 63, 64):
    P(f"v_xor_b32 v66, {S_TAG}, {v(r)}\nv_or_b32 v65, v65, v66")
P(f"v_cmp_ne_u32 vcc, 0, v65\ns_add_u32 {S_SPIN}, {S_SPIN}, 1\ns_cmp_lt_u32 {S_SPIN}, {SPIN_MAX}\ns_cselect_b64 vcc, vcc, 0\ns_cbranch_vccnz L_sw1")
stamp()
for i in range(4):
    P(f"v_lshlrev_b32 v64, 16, {v(50+4*i)}\nv_and_b32 v65, {S_MASK}, {v(50+4*i)}")
    for e in range(2):
        x = 32 + 4 * i + 2 * e; d = 68 + 2 * e
        P(f"v_lshlrev_b32 {v(d)}, 16, {v(x)}\nv_and_b32 {v(d+1)}, {S_MASK}, {v(x)}")
        P(f"v_pk_add_f32 {v(d,2)}, {v(d,2)}, v[64:65] op_sel:[0,{e}] op_sel_hi:[1,{e}] neg_lo:[0,1] neg_hi:[0,1]")
        P(f"v_cvt_pk_bf16_f32 v66, {v(d)}, {v(d+1)}\nv_lshlrev_b32 {v(d)}, 16, v66\nv_and_b32 {v(d+1)}, {S_MASK}, v66")
        P(f"v_pk_mul_f32 {v(d,2)}, {v(d,2)}, {v(48+4*i,2)} op_sel:[0,{e}] op_sel_hi:[1,{e}]")
    P(f"v_cvt_pk_bf16_f32 {v(72+i)}, v68, v70\nv_cvt_pk_bf16_f32 {v(76+i)}, v69, v71")
P("s_mov_b32 s10, 0x05040100\ns_mov_b32 s11, 0x07060302")
for i in range(4):
    P(f"v_perm_b32 {v(80+i)}, {v(34+4*i)}, {v(32+4*i)}, s10\nv_perm_b32 {v(84+i)}, {v(34+4*i)}, {v(32+4*i)}, s11")
P(f"v_lshlrev_b32 v28, 4, v0\nv_add_u32 v28, {L_U}, v28")
P(f"ds_write_b128 v28, v[72:75] offset:512\nds_write_b128 v28, v[76:79] offset:{512+4608}\nds_write_b128 v28, v[80:83] offset:{L_X-L_U}\nds_write_b128 v28, v[84:87] offset:{L_X-L_U+4096}")
P(f"s_mul_i32 s10, {S_CG}, 11\ns_mul_i32 s11, s3, 3\ns_add_u32 s10, s10, s11\ns_lshl_b32 s11, s10, 14\ns_add_u32 s11, s11, {W_P1+4096}")
P("v_lshl_add_u32 v24, v1, 4, s11\nv_add_u32 v25, 0x4000, v24\nv_add_u32 v26, 0x8000, v24\nv_mov_b32 v27, s11")
P("s_cmp_eq_u32 s3, 3\ns_cselect_b64 vcc, -1, 0\nv_cndmask_b32 v26, v26, v27, vcc")
W1R = lambda sl, ks: (ks * 3 + sl) * 4
for ks in range(16):
    if ks == 8: P("v_add_u32 v24, 0x2000, v24\nv_add_u32 v25, 0x2000, v25\nv_add_u32 v26, 0x2000, v26")
    for sl in range(3):
        P(f"global_load_dwordx4 {a(W1R(sl,ks),4)}, {v(24+sl)}, {WS} offset:{(ks&7)*1024-4096} sc1")
P(f"s_lshl_b32 s10, s10, 10\ns_add_u32 s10, s10, {W_CS}\nv_lshlrev_b32 v24, 8, v3\nv_lshl_add_u32 v24, v2, 2, v24\nv_add_u32 v24, s10, v24")
CSR = 116
for sl in range(3):
    for j in range(4):
        P(f"global_load_dword {v(CSR+4*sl+j)}, v24, {WS} offset:{1024*sl+64*j} sc1")
P("s_waitcnt lgkmcnt(0)\ns_barrier")
stamp()

P(f"s_lshr_b32 s10, s3, 1\ns_mul_i32 s11, s10, 4608\ns_and_b32 s15, s3, 1\ns_lshl_b32 s15, s15, 8\ns_add_u32 s11, s11, s15\ns_add_u32 s11, s11, {L_U+32}")
P("v_lshlrev_b32 v4, 5, v2\nv_lshl_add_u32 v4, v3, 4, v4\nv_add_u32 v4, s11, v4")
P(f"s_lshl_b32 s11, s3, 12\ns_add_u32 s11, s11, {L_YP}")
P("v_bfe_u32 v5, v2, 1, 2\nv_xor_b32 v5, v5, v3\nv_xor_b32 v5, s10, v5\nv_lshlrev_b32 v5, 4, v5\nv_lshl_add_u32 v5, v2, 6, v5\nv_add_u32 v5, s11, v5")
P("s_bfe_u32 s10, s2, 0x10001")
P("v_lshrrev_b32 v28, 3, v0\nv_bfe_u32 v29, v0, 1, 1\nv_bfe_u32 v30, v0, 2, 1\nv_xor_b32 v30, s10, v30\nv_and_b32 v31, 1, v0")
P("v_lshl_add_u32 v24, v28, 1, v30")
P(f"v_lshlrev_b32 v25, 1, v31\nv_and_b32 v26, 3, v28\nv_xor_b32 v25, v25, v26\nv_xor_b32 v25, v25, v29\nv_lshlrev_b32 v25, 4, v25\nv_lshl_add_u32 v25, v24, 6, v25\nv_lshl_add_u32 v25, v29, 13, v25")
P(f"v_add_u32 v6, {L_YP}, v25\nv_xor_b32 v7, 16, v6")
P("v_lshl_add_u32 v24, v24, 1, v31\nv_lshlrev_b32 v24, 4, v24")
P(f"v_mul_u32_u24 v25, 4608, v29\nv_add_u32 v25, {L_U+512}, v25\nv_add_u32 v8, v25, v24")
P(f"v_lshl_add_u32 v9, v29, 12, v24\nv_add_u32 v9, {L_X}, v9")
P(f"s_lshl_b32 s10, {S_DS}, 16\ns_and_b32 s11, {S_DS}, {S_MASK}\nv_mov_b32 v10, s10\nv_mov_b32 v11, s11\nv_cmp_eq_u32 vcc, 1, v29\nv_cndmask_b32 v10, v10, v11, vcc")
P(f"s_lshl_b32 s10, s2, 7\ns_add_u32 s10, s10, {W_HT}\nv_and_b32 v25, 7, v0\nv_lshlrev_b32 v25, 4, v25\nv_lshl_add_u32 v25, v28, 15, v25\nv_add_u32 v11, s10, v25")
def unpack(p, dst, src, n):
    for i in range(n):
        p(f"v_lshlrev_b32 {v(dst+2*i)}, 16, {v(src+i)}\nv_and_b32 {v(dst+2*i+1)}, {S_MASK}, {v(src+i)}")
def pack(p, dst, src, n):
    for i in range(n): p(f"v_cvt_pk_bf16_f32 {v(dst+i)}, {v(src+2*i)}, {v(src+2*i+1)}")
for step in range(2):
    taus = range(4 * step, 4 * step + 4)
    nb = 4 * step + 4
    first = set()
    for r in range(4):
        bb = 32 + 32 * (r & 1)
        for tp in range(nb): P(f"ds_read_b128 {v(bb+4*tp,4)}, v4 offset:{512*tp+64*r}")
        for tp in range(nb):
            for tau in taus:
                if tau >= tp:
                    acc = v(96 + 4 * (tau & 3), 4)
                    P(f"v_mfma_f32_16x16x32_bf16 {acc}, {v(AF(tau-tp,r),4)}, {v(bb+4*tp,4)}, {acc if tau in first else 0}")
                    first.add(tau)
    for tl in range(4): P(f"ds_write_b128 v5, {v(96+4*tl,4)} offset:{16384*step+1024*tl}")
    P(f"ds_read_b128 v[32:35], v8 offset:{2048*step}\nds_read_b128 v[36:39], v9 offset:{2048*step}")
    unpack(P, 40, 32, 4)
    for i in range(4): P(f"v_pk_mul_f32 {v(40+2*i,2)}, {v(40+2*i,2)}, v[10:11] op_sel_hi:[1,0]")
    pack(P, 32, 40, 4); unpack(P, 40, 32, 4); unpack(P, 48, 36, 4)
    P("s_waitcnt lgkmcnt(0)\ns_barrier")
    o = 16384 * step
    P(f"ds_read_b128 v[56:59], v6 offset:{o}\nds_read_b128 v[60:63], v7 offset:{o}\nds_read_b128 v[64:67], v6 offset:{o+4096}\nds_read_b128 v[68:71], v7 offset:{o+4096}")
    for i in range(4): P(f"v_pk_add_f32 {v(56+2*i,2)}, {v(56+2*i,2)}, {v(64+2*i,2)}")
    pack(P, 32, 56, 4); unpack(P, 56, 32, 4)
    for i in range(4): P(f"v_pk_add_f32 {v(56+2*i,2)}, {v(56+2*i,2)}, {v(40+2*i,2)}")
    pack(P, 32, 56, 4); unpack(P, 56, 32, 4)
    for i in range(4): P(f"v_pk_add_f32 {v(56+2*i,2)}, {v(56+2*i,2)}, {v(48+2*i,2)}")
    pack(P, 72, 56, 4)
    if step: P("v_add_u32 v11, 0x100000, v11")
    P(f"global_store_dwordx4 v11, v[72:75], {WS} sc1")
    stamp()

P(f"s_lshl_b32 s10, {S_RG}, 15\ns_lshl_b32 s11, s3, 13\ns_add_u32 s10, s10, s11\ns_add_u32 s10, s10, {W_HT+4096}")
P("v_lshl_add_u32 v4, v1, 4, s10\nv_lshl_add_u32 v5, v1, 4, s11")
P("v_bfe_u32 v28, v1, 3, 3\nv_lshlrev_b32 v28, 7, v28\nv_bfe_u32 v29, v1, 2, 1\nv_lshl_add_u32 v28, v29, 5, v28\nv_and_b32 v29, 3, v1\nv_lshl_add_u32 v28, v29, 3, v28")
P("v_and_b32 v29, 1, v3\nv_lshl_add_u32 v6, v29, 6, v28\nv_xor_b32 v7, 64, v6")
P(f"v_lshlrev_b32 v8, 5, v2\nv_add_u32 v8, {L_CT}, v8")
P(f"v_and_b32 v9, 31, v1\nv_lshlrev_b32 v9, 5, v9\nv_add_u32 v9, {L_CT}, v9")
P(f"s_mul_i32 s10, {S_RG}, 90112\ns_mul_i32 s11, {S_CG}, 2816\ns_add_u32 s10, s10, s11\ns_mul_i32 s11, s3, 768\ns_add_u32 s10, s10, s11\ns_add_u32 s10, s10, {W_ACT}")
P("v_mul_u32_u24 v28, 45056, v29\nv_lshrrev_b32 v29, 1, v3\nv_lshl_add_u32 v28, v29, 8, v28\nv_lshl_add_u32 v28, v2, 4, v28\nv_add_u32 v10, s10, v28")
C0 = -2.0 * math.log2(math.e) * math.sqrt(2.0 / math.pi)
P("s_waitcnt vmcnt(0)")

def g1_stage(p, st, w3):
    lab = f"L_h{st}{'b' if w3 else 'a'}"
    p(f"s_mov_b32 {S_SPIN}, 0\n{lab}:")
    for j in range(8): p(f"global_load_dwordx4 {v(32+4*j,4)}, v4, {WS} offset:{1024*j-4096} sc1")
    p("v_max3_u32 v64, v32, v36, v40\nv_max3_u32 v64, v64, v44, v48\nv_max3_u32 v64, v64, v52, v56\nv_max_u32 v64, v64, v60")
    p(f"v_cmp_eq_u32 vcc, -1, v64\ns_add_u32 {S_SPIN}, {S_SPIN}, 1\ns_cmp_lt_u32 {S_SPIN}, {SPIN_MAX}\ns_cselect_b64 vcc, vcc, 0\ns_cbranch_vccnz {lab}")
    for j in range(8): p(f"ds_write_b128 v5, {v(32+4*j,4)} offset:{1024*j}")
    p("v_add_u32 v4, 0x80000, v4\nv_add_u32 v5, 0x8000, v5")
    p("s_waitcnt lgkmcnt(0)\ns_barrier")
    ACC = lambda sl, t: 64 + (sl * 2 + t) * 4
    for ks in range(16):
        bb = 32 + 8 * (ks & 1)
        for t in range(2):
            p(f"ds_read_b64_tr_b16 {v(bb+4*t,2)}, {v(6+t)} offset:{2048*ks}\nds_read_b64_tr_b16 {v(bb+4*t+2,2)}, {v(6+t)} offset:{2048*ks+1024}")
        for sl in range(3):
            for t in range(2):
                A = v(bb + 4 * t, 4) if (w3 and sl == 2) else a(W1R(sl, ks), 4)
                p(f"v_mfma_f32_16x16x32_bf16 {v(ACC(sl,t),4)}, {A}, {v(bb+4*t,4)}, {v(ACC(sl,t),4) if ks else 0}")
    p("v_add_u32 v6, 0x8000, v6\nv_add_u32 v7, 0x8000, v7")
    if w3:
        for t in range(2):
            for r in range(4):
                m = sum(1 << (20 * g + r) for g in range(4))
                p(f"s_mov_b32 s10, 0x{m & 0xffffffff:x}\ns_mov_b32 s11, 0x{m >> 32:x}")
                p(f"v_cndmask_b32 {v(32+t)}, {v(32+t) if r else 0}, {v(ACC(2,t)+r)}, s[10:11]")
        p(f"v_mov_b32 v34, {v(ACC(1,0))}\nv_mov_b32 v35, {v(ACC(1,1))}")
        p("v_permlane16_swap_b32 v32, v33\nv_permlane16_swap_b32 v34, v35\nv_add_f32 v32, v32, v33\nv_mov_b32 v33, v32\nv_permlane32_swap_b32 v32, v33\nv_add_f32 v32, v32, v33")
        ln_stats(p, "v35", "v32", "v33", "v34")
        p("v_cvt_pk_bf16_f32 v36, -v35, -v35\nv_mov_b32 v37, v36\nv_mov_b32 v38, v36\nv_mov_b32 v39, v36")
        p(f"v_rcp_f32 v33, v32\nv_mul_f32 v42, v32, v32\nv_mul_f32 v40, 0x{f2u(C0):x}, v33\nv_mul_f32 v33, v33, v33\nv_mul_f32 v33, 0x{f2u(0.044715):x}, v33\nv_mul_f32 v41, v40, v33\nv_mov_b32 v43, 0")
        p("s_mov_b32 exec_lo, 0\nds_write_b128 v9, v[36:39]\nds_write_b128 v9, v[40:43] offset:16\ns_mov_b32 exec_lo, -1")
    p("s_waitcnt lgkmcnt(0)\ns_barrier")
    for t in range(2):
        p(f"ds_read_b128 {v(32+8*t,4)}, v8 offset:{512*t}\nds_read_b128 {v(36+8*t,4)}, v8 offset:{512*t+16}")
    ns = 2 if w3 else 3
    for sl in range(ns):
        for t in range(2):
            p(f"v_mfma_f32_16x16x32_bf16 {v(ACC(sl,t),4)}, {v(CSR+4*sl,4)}, {v(32+8*t,4)}, {v(ACC(sl,t),4)}")
    for sl in range(ns):
        for t in range(2):
            c = ACC(sl, t); k0, k1, s2 = v(36 + 8 * t), v(37 + 8 * t), v(38 + 8 * t)
            for e in range(2):
                g_, u_, tt = v(c + e), v(c + 3 - e), v(48 + e)
                p(f"v_mul_f32 {tt}, {g_}, {g_}\nv_fma_f32 {tt}, {tt}, {k1}, {k0}\nv_mul_f32 {tt}, {g_}, {tt}\nv_exp_f32 {tt}, {tt}\nv_mul_f32 {u_}, {g_}, {u_}")
                p(f"v_fma_f32 {tt}, {tt}, {s2}, {s2}\nv_rcp_f32 {tt}, {tt}\nv_mul_f32 {tt}, {u_}, {tt}")
            p(f"v_cvt_pk_bf16_f32 {v(52+2*sl+t)}, v48, v49")
    for sl in range(ns): p(f"v_permlane16_swap_b32 {v(52+2*sl)}, {v(53+2*sl)}")
    p(f"global_store_dwordx4 v10, v[52:55], {WS} sc1")
    if not w3:
        p("v_permlane32_swap_b32 v56, v58\nv_permlane32_swap_b32 v57, v59")
        p(f"s_mov_b32 exec_hi, 0\nglobal_store_dwordx4 v10, v[56:59], {WS} offset:512 sc1\ns_mov_b32 exec_hi, -1")
    p(f"v_add_u32 v10, {16*90112}, v10")

P("s_cmp_eq_u32 s3, 3\ns_cbranch_scc1 L_g1w3")
k0 = nstamp[0]
for st in range(4):
    g1_stage(P, st, False)
    if st in (0, 3): stamp()
P("s_branch L_g2\nL_g1w3:")
nstamp[0] = k0
for st in range(4):
    g1_stage(P, st, True)
    if st in (0, 3): stamp()
P("L_g2:")
P(f"s_add_u32 s10, s2, s3\ns_cmp_lg_u32 s10, 0\ns_cbranch_scc1 L_nb\nv_mov_b32 v28, {W_EP}\nv_mov_b32 v29, {S_TAG}\ns_mov_b64 exec, 1\nglobal_store_dword v28, v29, {WS} sc1\ns_mov_b64 exec, -1\nL_nb:")
P(f"s_lshl_b32 s10, {S_OG}, 2\ns_add_u32 s10, s10, s3\ns_mul_i32 s10, s10, 45056\ns_add_u32 s10, s10, {W_P2+4096}\nv_lshl_add_u32 v28, v1, 4, s10")
W2R = lambda j, t: (j * 4 + t) * 4
for n in range(44):
    if n and n % 8 == 0: P("v_add_u32 v28, 0x2000, v28")
    P(f"global_load_dwordx4 {a(4*n,4)}, v28, {WS} offset:{(n&7)*1024-4096} sc1")
P(f"s_lshl_b32 s10, {S_RG}, 1\ns_add_u32 s10, s10, {S_TS}\ns_mul_i32 s10, s10, 45056\ns_mul_i32 s11, s3, 11264\ns_add_u32 s10, s10, s11\ns_add_u32 s10, s10, {W_ACT+4096}")
P("v_lshl_add_u32 v4, v1, 4, s10\nv_add_u32 v5, 0x2000, v4")
P(f"s_lshl_b32 s10, {S_OG}, 12\ns_lshl_b32 s11, s3, 10\ns_add_u32 s10, s10, s11\ns_sub_u32 s10, s10, 0x20000\ns_lshl_b32 s11, {S_TS}, 6")
P("v_xor_b32 v6, s11, v6\nv_add_u32 v6, s10, v6")
P(f"s_lshl_b32 s10, s3, 12\ns_add_u32 s10, s10, {L_PP}\nv_and_b32 v28, 7, v2\nv_xor_b32 v28, v28, v3\nv_lshlrev_b32 v28, 4, v28\nv_lshl_add_u32 v28, v2, 8, v28\nv_add_u32 v28, s10, v28")
for tl in range(4):
    P(f"s_add_u32 s10, s3, {tl}\ns_and_b32 s10, s10, 3\ns_lshl_b32 s10, s10, 6\nv_xor_b32 {v(12+tl)}, s10, v28")
P(f"v_lshrrev_b32 v28, 4, v0\nv_and_b32 v29, 7, v28\nv_xor_b32 v29, v29, v2\nv_lshlrev_b32 v29, 4, v29\nv_lshl_add_u32 v29, v28, 8, v29\nv_add_u32 v7, {L_PP}, v29")
P(f"s_lshl_b32 s10, {S_RG}, 15\ns_lshl_b32 s11, {S_TS}, 14\ns_add_u32 s10, s10, s11\ns_lshl_b32 s11, {S_OG}, 7\ns_add_u32 s10, s10, s11")
P("v_lshlrev_b32 v28, 10, v28\nv_lshl_add_u32 v28, v2, 3, v28\nv_add_u32 v8, s10, v28")
P("s_waitcnt vmcnt(0)")
for st in range(4):
    P(f"ds_read_b64_tr_b16 v[24:25], v6")
    unpack(P, 20, 24, 2)
    P(f"s_mov_b32 {S_SPIN}, 0\nL_a{st}:")
    for j in range(11):
        P(f"global_load_dwordx4 {v(32+4*j,4)}, {'v4' if j < 8 else 'v5'}, {WS} offset:{(j&7)*1024-4096} sc1")
    for j in range(11):
        for t in range(4):
            cin = v(80 + 4 * t, 4) if j else ("v[20:23]" if t == 0 else 0)
            P(f"v_mfma_f32_16x16x32_bf16 {v(80+4*t,4)}, {a(W2R(j,t),4)}, {v(32+4*j,4)}, {cin}")
    P(f"v_cmp_u_f32 vcc, v92, v92\ns_add_u32 {S_SPIN}, {S_SPIN}, 1\ns_cmp_lt_u32 {S_SPIN}, {SPIN_MAX}\ns_cselect_b64 vcc, vcc, 0\ns_cbranch_vccnz L_a{st}")
    if st: P("s_barrier")
    for t in range(4): P(f"ds_write_b128 {v(12+t)}, {v(80+4*t,4)}")
    P(f"v_add_u32 v4, {16*90112}, v4\nv_add_u32 v5, {16*90112}, v5\nv_add_u32 v6, 0x8000, v6")
    P("s_waitcnt lgkmcnt(0)\ns_barrier")
    for w_ in range(4): P(f"ds_read_b128 {v(32+4*w_,4)}, v7 offset:{4096*w_}")
    P("v_pk_add_f32 v[32:33], v[32:33], v[36:37]\nv_pk_add_f32 v[34:35], v[34:35], v[38:39]\nv_pk_add_f32 v[40:41], v[40:41], v[44:45]\nv_pk_add_f32 v[42:43], v[42:43], v[46:47]")
    P("v_pk_add_f32 v[32:33], v[32:33], v[40:41]\nv_pk_add_f32 v[34:35], v[34:35], v[42:43]")
    P(f"v_cvt_pk_bf16_f32 v48, v32, v33\nv_cvt_pk_bf16_f32 v49, v34, v35\nglobal_store_dwordx2 v8, v[48:49], {OUTP}")
    P("v_add_u32 v8, 0x80000, v8")
stamp()
if STAMPS:
    P("s_waitcnt lgkmcnt(0)")
    P(f"s_lshl_b32 s10, s2, 2\ns_add_u32 s10, s10, s3\ns_lshl_b32 s10, s10, 6\ns_add_u32 s10, s10, {W_STAMP}\nv_mov_b32 v28, s10\ns_mov_b64 exec, 1")
    for k in range(nstamp[0]):
        P(f"v_mov_b32 v29, s{64+2*k}\nglobal_store_dword v28, v29, {WS} offset:{4*k}")
P("L_end:\ns_endpgm")

code = insert_nops(insert_waits(P.l))
hdr = open("cdna_kernels/" + NAME + ".s.ref").read().split("; Override launch")[0]
txt = hdr + f"""; @launch grid=(256,1,1) block=(256,1,1) lds={LDS_BYTES}
.amdgcn_target "amdgcn-amd-amdhsa--gfx950"
.text
.globl {NAME}_kernel
.p2align 8
.type {NAME}_kernel,@function
{NAME}_kernel:
""" + render(code) + f""".section .rodata,"a"
.p2align 6
.amdhsa_kernel {NAME}_kernel
  .amdhsa_next_free_vgpr 512
  .amdhsa_next_free_sgpr 102
  .amdhsa_accum_offset 256
  .amdhsa_group_segment_fixed_size 0
  .amdhsa_kernarg_size 112
  .amdhsa_user_sgpr_count 2
  .amdhsa_user_sgpr_kernarg_segment_ptr 1
  .amdhsa_system_sgpr_workgroup_id_x 1
  .amdhsa_float_denorm_mode_32 3
.end_amdhsa_kernel
"""
open(OUT, "w").write(txt)
print("instructions:", sum(1 for i in code if i.kind not in ("label", "dir")), "stamps:", nstamp[0])
```
